```python
import torch

def _softmax(x, axis=-1):
    return torch.softmax(x, dim=axis)
def _gelu(x):
    return torch.nn.functional.gelu(x, approximate="tanh")
def _silu(x):
    return torch.nn.functional.silu(x)
def _sigmoid(x):
    return torch.sigmoid(x)
def _layernorm(x, axis=-1, eps=1e-5):
    m = x.mean(dim=axis, keepdim=True)
    v = x.var(dim=axis, keepdim=True, unbiased=False)
    return (x - m) / torch.sqrt(v + eps)
def _scatter_add(tgt, idx, src, axis=0):
    return tgt.clone().index_add_(axis, idx, src)
def _segment_sum(src, seg, n):
    out = torch.zeros((n,) + src.shape[1:], dtype=src.dtype)
    return out.index_add_(0, seg, src)
def _pad(x, pw):
    flat = tuple(v for pair in reversed(pw) for v in pair)
    return torch.nn.functional.pad(x, flat)

kernel_name = 'parallel_sum__spectral_gfnet__dense_activation_silu__prompt'

def setup_inputs():

    _w = (lambda a: (lambda t: t.to(torch.bfloat16) if t.is_floating_point() else t)(torch.as_tensor(a)))
    def _A_setup():
        B, S, D = 1, 2048, 576
        Df = D // 2 + 1
        return {
            "x": _w((lambda *s: torch.randn(*s, dtype=torch.bfloat16) * 0.05)(B, S, D)),
            "w_r": _w((lambda *s: torch.randn(*s, dtype=torch.bfloat16) * 0.8)(S, Df) * 0.02),
            "w_i": _w((lambda *s: torch.randn(*s, dtype=torch.bfloat16) * 0.8)(S, Df) * 0.02),
        }
    _A_in = _A_setup()

    def _B_setup():
        B, S, D, F = 1, 2048, 576, 4608
        return {
            "x": _w((lambda *s: torch.randn(*s, dtype=torch.bfloat16) * 0.05)(B, S, D)),
            "w1": _w((lambda *s: torch.randn(*s, dtype=torch.bfloat16) * 0.8)(D, F) * (D ** -0.5)),
            "w2": _w((lambda *s: torch.randn(*s, dtype=torch.bfloat16) * 0.1)(F, D) * (F ** -0.5)),
        }
    _B_in = _B_setup()

    return {
        "A_x": _A_in["x"],
        "A_w_r": _A_in["w_r"],
        "A_w_i": _A_in["w_i"],
        "B_x": _B_in["x"],
        "B_w1": _B_in["w1"],
        "B_w2": _B_in["w2"],
    }

def reference(A_x, A_w_r, A_w_i, B_x, B_w1, B_w2):
    def _A_ref(x, w_r, w_i):
        B, S, D = x.shape
        X = (lambda x, axes=(-2,-1): torch.fft.rfft2(x.float(), dim=axes))(x, axes=(-2, -1))
        W = w_r + 1j * w_i
        X = X * W
        y = (lambda x, s, axes=(-2,-1): torch.fft.irfft2(x, s=s, dim=axes).to(torch.bfloat16))(X, (S, D), axes=(-2, -1))
        return y

    def _B_ref(x, w1, w2):
        h = torch.einsum("bsd,df->bsf", x, w1)
        h = _silu(h)
        out = torch.einsum("bsf,fd->bsd", h, w2)
        return out

    x = A_x
    xn = _layernorm(x, axis=-1)
    return x + _A_ref(xn, A_w_r, A_w_i) + _B_ref(xn, B_w1, B_w2)
```

```python
from asmlib import vr, sr, f32
import gen
from gen import (sWS, sWR, sWI, sJ, sI, sJJ, sC, sT, sHIMASK, L_MISC, L_G, L_ZP, WS_U, WS_V, WS_FU, WS_FV, spin, init_check)

MF = 'v_mfma_f32_16x16x32_bf16'
sKB, sUB, sVB = 4, 5, 6


def perm(e):
    return e if e < 4 else 16 + e - 4


def plan(st, cfg, ctx):
    R, side, first = ctx['R'], ctx['side'], ctx['first']
    g = {}

    def mf(d, a, b, c):
        st.I(f'{MF} {vr(d, 4)}, {vr(a, 4)}, {vr(b, 4)}, {vr(d, 4) if c else 0}')

    def masked(mask, fn):
        st.I(f's_mov_b64 exec, {mask}')
        fn()
        st.I('s_mov_b64 exec, -1')

    def lanes():
        g['n16'], g['q'], g['l'] = R.get(), R.get(), R.get()
        st.I(f'''v_and_b32 v{g["l"]}, 63, v0
        v_and_b32 v{g["n16"]}, 15, v0
        v_lshrrev_b32 v{g["q"]}, 4, v{g["l"]}
        s_mul_i32 s{sKB}, s{sJ}, 36
        s_cmp_eq_u32 s{sJ}, 7
        s_cselect_b32 s{sT}, 3, 0
        s_sub_u32 s{sKB}, s{sKB}, s{sT}
        s_lshl_b32 s{sT}, s{sJ}, 5
        s_add_u32 s{sT}, s{sT}, s{sI}
        s_mul_i32 s{sT}, s{sT}, 10240
        s_add_u32 s{sUB}, s{sT}, {WS_U}
        s_add_u32 s{sVB}, s{sT}, {WS_V}''')

    def w_dma():
        a, b, c = R.get(), R.get(), R.get()
        va = R.get(2)
        for t in range(2):
            st.I(f'''s_mul_i32 s{sT}, s{sC}, 80
            s_add_u32 s{sT}, s{sT}, {64*t}
            v_add_u32 v{a}, s{sT}, v{g["l"]}
            v_mul_u32_u24 v{b}, 6554, v{a}
            v_lshrrev_b32 v{b}, 16, v{b}
            v_mul_u32_u24 v{c}, 10, v{b}
            v_sub_u32 v{a}, v{a}, v{c}
            v_mul_u32_u24 v{b}, {64*578}, v{b}
            v_cmp_lt_u32 vcc, 4, v{a}
            v_lshl_add_u32 v{b}, v{a}, 4, v{b}
            v_add_u32 v{c}, {578 - 80}, v{b}
            v_cndmask_b32 v{va+t}, v{b}, v{c}, vcc''')
        st.I(f'''s_mul_i32 s{sT}, s{sI}, {2*578}
        s_lshl_b32 s{sT+1}, s{sKB}, 1
        s_add_u32 s{sT}, s{sT}, s{sT+1}
        s_mul_i32 s{sT+1}, s{sC}, 1280''')
        for arr, srdn in ((0, sWR), (1, sWI)):
            for t in range(2):
                st.I(f's_add_u32 m0, s{sT+1}, {L_MISC + arr*5120 + t*1024}')
                if t:
                    masked('0xffff', lambda: st.V(f'buffer_load_dwordx4 v{va+1}, {sr(srdn, 4)}, s{sT} offen lds', 'wd'))
                else:
                    st.I('s_nop 0')
                    st.V(f'buffer_load_dwordx4 v{va}, {sr(srdn, 4)}, s{sT} offen lds', 'wd')
        R.put(a, b, c, va)

    def gen_dft():
        g['F'] = [[R.take(112 + 72*b + 4*kk, 4) for kk in range(18)] for b in range(2)]
        kf, ph, df, t, mu = R.get(), R.get(), R.get(), R.get(), R.get()
        c = [R.get(8), R.get(8)]
        st.I(f'v_lshlrev_b32 v{df}, 3, v{g["q"]}\nv_cvt_f32_u32 v{df}, v{df}')
        for blk in range(2):
            if blk == 0:
                st.I(f'''s_lshr_b32 s{sT}, s{sC}, 1
                s_lshl_b32 s{sT}, s{sT}, 4
                s_add_u32 s{sT}, s{sT}, s{sKB}
                v_add_u32 v{kf}, s{sT}, v{g["n16"]}
                s_and_b32 s{sT}, s{sC}, 1
                v_cvt_f32_u32 v{ph}, s{sT}''')
            else:
                st.I(f'''s_add_u32 s{sT}, s{sKB}, 32
                v_and_b32 v{kf}, 7, v{g["n16"]}
                v_add_u32 v{kf}, s{sT}, v{kf}
                v_lshrrev_b32 v{ph}, 3, v{g["n16"]}
                v_cvt_f32_u32 v{ph}, v{ph}''')
            st.I(f'''v_cvt_f32_u32 v{kf}, v{kf}
            v_mul_f32 v{ph}, 0x3e800000, v{ph}
            v_mul_f32 v{kf}, {f32(1/576)}, v{kf}
            v_mul_f32 v{mu}, 0x42000000, v{kf}
            v_cos_f32 v{mu}, v{mu}
            v_fma_f32 v{ph}, v{kf}, v{df}, v{ph}
            v_add_f32 v{mu}, v{mu}, v{mu}''')
            for kk in range(2):
                for e in range(8):
                    st.I(f'v_mov_b32 v{t}, {f32(32*kk + e)}\nv_fma_f32 v{c[kk]+e}, v{kf}, v{t}, v{ph}')
                for e in range(8):
                    st.I(f'v_cos_f32 v{c[kk]+e}, v{c[kk]+e}')
            for kk in range(18):
                cur = c[kk & 1]
                if kk >= 2:
                    for e in range(8):
                        st.I(f'v_fma_f32 v{cur+e}, v{mu}, v{c[(kk+1) & 1]+e}, -v{cur+e}')
                for h in range(4):
                    st.I(f'v_cvt_pk_bf16_f32 v{g["F"][blk][kk] + h}, v{cur+2*h}, v{cur+2*h+1}')
        R.put(kf, ph, df, t, mu, *c)

    def trig_frags(name, base, step, offs, want_ns):
        nf = len(offs)
        C, S = R.get(4*nf), R.get(4*nf)
        NS = R.get(4*nf) if want_ns else None
        t = R.get(2)
        cs = R.get(4)
        o = R.get()
        for f in range(nf):
            for h in range(4):
                for y in range(2):
                    st.I(f'v_mov_b32 v{o}, {f32(offs[f][2*h+y])}\nv_fma_f32 v{t+y}, v{step}, v{o}, v{base}')
                st.I(f'''v_cos_f32 v{cs}, v{t}
                v_cos_f32 v{cs+1}, v{t+1}
                v_sin_f32 v{cs+2}, v{t}
                v_sin_f32 v{cs+3}, v{t+1}
                v_cvt_pk_bf16_f32 v{C+4*f+h}, v{cs}, v{cs+1}
                v_cvt_pk_bf16_f32 v{S+4*f+h}, v{cs+2}, v{cs+3}''')
                if want_ns:
                    st.I(f'v_xor_b32 v{NS+4*f+h}, 0x80008000, v{S+4*f+h}')
        R.put(t, cs, o)
        g[name] = (C, S, NS)

    def gen_s1():
        ka, base, step = R.get(), R.get(), R.get()
        st.I(f'''s_lshl_b32 s{sT}, s{sC}, 4
        v_add_u32 v{ka}, s{sT}, v{g["n16"]}
        v_cvt_f32_u32 v{ka}, v{ka}
        v_lshlrev_b32 v{base}, 7, v{g["q"]}
        v_add_u32 v{base}, s{sI}, v{base}
        v_cvt_f32_u32 v{base}, v{base}
        v_mul_f32 v{base}, v{base}, v{ka}
        v_mul_f32 v{base}, {f32(1/2048)}, v{base}
        v_mul_f32 v{step}, {f32(1/64)}, v{ka}''')
        trig_frags('s1', base, step, [[32*t + perm(e) for e in range(8)] for t in range(2)], True)
        R.put(ka, base, step)

    def gen_s3():
        base, step = R.get(), R.get()
        st.I(f'''s_lshl_b32 s{sT}, s{sC}, 9
        s_add_u32 s{sT}, s{sT}, s{sI}
        v_lshlrev_b32 v{step}, 5, v{g["n16"]}
        v_add_u32 v{step}, s{sT}, v{step}
        v_cvt_f32_u32 v{step}, v{step}
        v_mul_f32 v{step}, {f32(1/2048)}, v{step}
        v_lshlrev_b32 v{base}, 2, v{g["q"]}
        v_cvt_f32_u32 v{base}, v{base}
        v_mul_f32 v{base}, v{base}, v{step}''')
        trig_frags('s3', base, step, [[32*t + perm(e) for e in range(8)] for t in range(2)], False)
        R.put(base, step)

    def gen_f32():
        base, step = R.get(), R.get()
        st.I(f'''v_cvt_f32_u32 v{step}, v{g["n16"]}
        v_mul_f32 v{step}, {f32(1/32)}, v{step}
        v_lshlrev_b32 v{base}, 2, v{g["q"]}
        v_cvt_f32_u32 v{base}, v{base}
        v_mul_f32 v{base}, v{base}, v{step}''')
        trig_frags('f0', base, step, [[perm(e) for e in range(8)]], True)
        f1 = tuple(R.get(4) for _ in range(3))
        for x in range(3):
            for h in range(4):
                st.I(f'v_xor_b32 v{f1[x]+h}, 0x80000000, v{g["f0"][x]+h}')
        g['f32'] = (g['f0'], f1)
        R.put(base, step)

    def w_frags():
        a = R.get(2)
        g['W'] = [R.get(8), R.get(8)]
        g['sc'] = R.get(2)
        t = R.get(2)
        st.I(f'''v_lshrrev_b32 v{t}, 2, v{g["l"]}
        v_mul_u32_u24 v{t}, 160, v{t}
        v_and_b32 v{t+1}, 3, v{g["l"]}
        v_lshl_add_u32 v{a}, v{t+1}, 3, v{t}
        s_and_b32 s{sT}, s{sC}, 1
        s_mul_i32 s{sT}, s{sT}, 80
        s_lshr_b32 s{sT+1}, s{sC}, 1
        s_lshl_b32 s{sT+1}, s{sT+1}, 5
        s_add_u32 s{sT}, s{sT}, s{sT+1}
        s_add_u32 s{sT}, s{sT}, {L_MISC}
        v_add_u32 v{a}, s{sT}, v{a}
        v_lshrrev_b32 v{a+1}, 1, v{t+1}
        v_mul_u32_u24 v{a+1}, 80, v{a+1}
        v_add_u32 v{a+1}, v{a+1}, v{t}
        v_and_b32 v{t+1}, 1, v{t+1}
        v_lshl_add_u32 v{a+1}, v{t+1}, 3, v{a+1}
        v_add_u32 v{a+1}, {L_MISC + 64}, v{a+1}''')
        for u in range(2):
            for arr in range(2):
                for kbb in range(2):
                    st.D(f'ds_read_b64_tr_b16 {vr(g["W"][u] + 4*arr + 2*kbb, 2)}, v{a+u} offset:{arr*5120 + kbb*2560}')
        st.I(f's_cmp_eq_u32 s{sJ}, 7\ns_cselect_b32 s{sT+2}, 3, 0\ns_cselect_b32 s{sT+3}, 37, 36')
        for u in range(2):
            d = g['sc'] + u
            if u == 0:
                st.I(f's_lshr_b32 s{sT}, s{sC}, 1\ns_lshl_b32 s{sT}, s{sT}, 4\nv_add_u32 v{t}, s{sT}, v{g["n16"]}')
            else:
                st.I(f'v_and_b32 v{t}, 7, v{g["n16"]}\nv_add_u32 v{t}, 32, v{t}')
            st.I(f'''v_add_u32 v{t+1}, s{sKB}, v{t}
            v_mov_b32 v{d}, {f32(2/(2048*576))}
            v_mov_b32 v4, {f32(1/(2048*576))}
            v_cmp_eq_u32 vcc, 0, v{t+1}
            v_cndmask_b32 v{d}, v{d}, v4, vcc
            v_cmp_eq_u32 vcc, 0x120, v{t+1}
            v_cndmask_b32 v{d}, v{d}, v4, vcc
            v_subrev_u32 v{t}, s{sT+2}, v{t}
            v_cmp_gt_u32 vcc, s{sT+3}, v{t}
            v_cndmask_b32 v{d}, 0, v{d}, vcc''')
        R.put(a, t)

    def dft_setup():
        g['xa'] = 8
        g['acc'] = [R.get(4) for _ in range(5)]
        g['xb'] = [[R.get(4) for _ in range(5)] for _ in range(2)]
        t = R.get()
        for par in range(2):
            d = g['xa'] + par
            st.I(f'''v_add_u32 v{t}, {4*par}, v{g["q"]}
            v_xor_b32 v{t}, v{t}, v{g["n16"]}
            v_lshlrev_b32 v{t}, 4, v{t}
            v_lshl_add_u32 v{d}, v{g["q"]}, 8, v{t}
            v_add_u32 v{d+2}, {14*4096}, v{d}
            s_lshl_b32 s{sT}, s{sC}, 10
            v_add_u32 v{d+4}, s{sT}, v{d}
            v_add_u32 v{d+6}, s{sT}, v{d+2}''')
        R.put(t)

    def dft_read(kk, x):
        hi = kk >= 14
        off = (kk - (14 if hi else 0))*4096
        base = g['xa'] + (kk & 1) + (2 if hi else 0)
        dst = g['xb'][kk & 1][x]
        if x < 4:
            st.D(f'ds_read_b128 {vr(dst, 4)}, v{base} offset:{off + x*1024}', ('xf', kk))
        else:
            st.D(f'ds_read_b128 {vr(dst, 4)}, v{base+4} offset:{off}', ('xf', kk))

    def dft(k0, k1):
        def fn():
            if k0 == 0:
                for x in range(5):
                    dft_read(0, x)
            for kk in range(k0, k1):
                st.wait_lg(('xf', kk))
                for x in range(5):
                    mf(g['acc'][x], g['xb'][kk & 1][x], g['F'][x // 4][kk], kk)
                    if kk + 1 < 18:
                        dft_read(kk + 1, x)
                R.put(g['F'][0][kk], g['F'][1][kk])
        return fn

    def z_write():
        z = g['xb'][0]
        a = R.get(2)
        st.I(f'''v_lshlrev_b32 v{a}, 4, v{g["l"]}
        s_lshr_b32 s{sT}, s{sC}, 1
        s_lshl_b32 s{sT}, s{sT}, 10
        s_and_b32 s{sT+1}, s{sC}, 1
        s_lshl_b32 s{sT+1}, s{sT+1}, 3
        s_add_u32 s{sT}, s{sT}, s{sT+1}
        s_add_u32 s{sT}, s{sT}, {L_MISC + 8192}
        v_add_u32 v{a+1}, s{sT}, v{a}
        s_lshl_b32 s{sT}, s{sC}, 11
        s_add_u32 s{sT}, s{sT}, {L_MISC}
        v_add_u32 v{a}, s{sT}, v{a}''')
        for e in range(10):
            src = g['acc'][e >> 1] + 2*(e & 1)
            st.I(f'v_cvt_pk_bf16_f32 v{z[e >> 2] + (e & 3)}, v{src}, v{src+1}')
        for t in range(2):
            st.D(f'ds_write_b128 v{a}, {vr(z[t], 4)} offset:{t*1024}')
        st.D(f'ds_write_b64 v{a+1}, {vr(z[2], 2)}')
        st.wait_lg0()
        R.put(a, *g['acc'], *g['xb'][0], *g['xb'][1])

    def stage1():
        Z = R.get(48)
        U = R.get(20)
        a = R.get(2)
        sg = R.get()
        st.I(f'''v_lshlrev_b32 v{a}, 4, v{g["l"]}
        v_add_u32 v{a}, {L_MISC}, v{a}
        v_xor_b32 v{a+1}, 128, v{a}
        v_and_b32 v{sg}, 8, v{g["l"]}
        v_mul_u32_u24 v{sg}, 0x1000, v{sg}
        v_lshl_add_u32 v{sg}, v{sg}, 16, v{sg}''')
        for f in range(10):
            st.D(f'ds_read_b128 {vr(Z+4*f, 4)}, v{a} offset:{f*1024}', ('z', f))
        for t in range(2):
            st.D(f'ds_read_b128 {vr(Z+40+4*t, 4)}, v{a+1} offset:{8192 + t*1024}', ('z', 10+t))
        C, S, NS = g['s1']
        for pair in range(2):
            st.wait_lg(('z', 4*pair + 3))
            re, im = Z + 16*pair, Z + 16*pair + 8
            for t in range(2):
                mf(U + 8*pair, re + 4*t, C + 4*t, t)
                mf(U + 8*pair + 4, im + 4*t, C + 4*t, t)
                mf(U + 8*pair, im + 4*t, S + 4*t, 1)
                mf(U + 8*pair + 4, re + 4*t, NS + 4*t, 1)
        st.wait_lg0()
        for e in range(8):
            st.I(f'v_xor_b32 v{Z+40+e}, v{sg}, v{Z+40+e}')
        for t in range(2):
            mf(U + 16, Z + 32 + 4*t, C + 4*t, t)
            mf(U + 16, Z + 40 + 4*t, S + 4*t, 1)
        st.I(f'''v_lshlrev_b32 v{a}, 6, v{g["n16"]}
        v_lshl_add_u32 v{a}, v{g["q"]}, 4, v{a}
        v_lshrrev_b32 v{a+1}, 1, v{a}
        s_lshl_b32 s{sT}, s{sC}, 10
        s_add_u32 s{sT}, s{sT}, s{sUB}
        s_add_u32 s{sT+1}, s{sT}, 4096
        s_lshl_b32 s{sT+2}, s{sC}, 9
        s_add_u32 s{sT+2}, s{sT+2}, s{sUB}
        s_add_u32 s{sT+2}, s{sT+2}, 8192''')
        for e in range(10):
            st.I(f'v_cvt_pk_bf16_f32 v{Z+e}, v{U+2*e}, v{U+2*e+1}')
        st.V(f'buffer_store_dwordx4 {vr(Z, 4)}, v{a}, {sr(sWS, 4)}, s{sT} offen sc1', 'us')
        st.V(f'buffer_store_dwordx4 {vr(Z+4, 4)}, v{a}, {sr(sWS, 4)}, s{sT+1} offen sc1', 'us')
        st.V(f'buffer_store_dwordx2 {vr(Z+8, 2)}, v{a+1}, {sr(sWS, 4)}, s{sT+2} offen sc1', 'us')
        st.I('s_nop 1')
        R.put(Z, U, a, sg, *g['s1'])

    def flag(tag, base):
        def fn():
            o = R.get(2)
            st.I(f'''v_mov_b32 v{o}, 0
            v_mov_b32 v{o+1}, 1
            s_lshl_b32 s{sT}, s{sJ}, 5
            s_add_u32 s{sT}, s{sT}, s{sI}
            s_lshl_b32 s{sT}, s{sT}, 2
            s_add_u32 s{sT}, s{sT}, s{sC}
            s_lshl_b32 s{sT}, s{sT}, 2
            s_add_u32 s{sT}, s{sT}, {base}''')
            st.wait_vm(tag)
            masked('1', lambda: st.V(f'buffer_store_dword v{o+1}, v{o}, {sr(sWS, 4)}, s{sT} offen sc1'))
            R.put(o)
        return fn

    def gather(name, fbase, dbase, lane_fn):
        def fn():
            va = R.get(3, 1)
            p, s_, pc = R.get(), R.get(), R.get()
            for t in range(3):
                st.I(f'''s_mul_i32 s{sT}, s{sC}, 160
                s_add_u32 s{sT}, s{sT}, {64*t}
                v_add_u32 v{p}, s{sT}, v{g["l"]}
                v_mul_u32_u24 v{s_}, 3277, v{p}
                v_lshrrev_b32 v{s_}, 16, v{s_}
                v_mul_u32_u24 v{pc}, 20, v{s_}
                v_sub_u32 v{pc}, v{p}, v{pc}''')
                lane_fn(pc, p)
                st.I(f'v_mul_u32_u24 v{s_}, 10240, v{s_}\nv_add_u32 v{va+t}, v{s_}, v{p}')
            init_check(st, ctx)
            fd = R.get(2)
            st.I(f'v_lshlrev_b32 v{p}, 3, v{g["l"]}\ns_lshl_b32 s{sT+5}, s{sJ}, 9\ns_add_u32 s{sT+5}, s{sT+5}, {fbase}')
            spin(st, name, fd, p, sWS, f's{sT+5}', lambda v: f'v_min_u32 v{v}, v{v}, v{v+1}\nv_cmp_ne_u32 vcc, 0, v{v}', 'exec', width=2)
            st.I(f's_mul_i32 s{sT}, s{sJ}, {32*10240}\ns_add_u32 s{sT}, s{sT}, {dbase}\ns_mul_i32 s{sT+1}, s{sC}, 2560')
            for t in range(3):
                st.I(f's_add_u32 m0, s{sT+1}, {L_MISC + t*1024}')
                ld = lambda: st.V(f'buffer_load_dwordx4 v{va+t}, {sr(sWS, 4)}, s{sT} offen sc1 lds', name)
                if t == 2:
                    masked('0xffffffff', ld)
                else:
                    st.I('s_nop 0')
                    ld()
            R.put(va, p, s_, pc, fd)
        return fn

    def u_lane(pc, out):
        st.I(f'''v_lshrrev_b32 v4, 3, v{pc}
        v_and_b32 v5, 7, v{pc}
        v_lshlrev_b32 v5, 4, v5
        v_lshl_add_u32 v5, v4, 12, v5
        s_lshl_b32 s{sT}, s{sI}, 7
        s_lshl_b32 s{sT+1}, s{sI}, 6
        v_add_u32 v6, s{sT}, v5
        v_add_u32 v5, s{sT+1}, v5
        v_cmp_gt_u32 vcc, 16, v{pc}
        v_cndmask_b32 v{out}, v5, v6, vcc''')

    def v_lane(pc, out):
        st.I(f'''v_cmp_lt_u32 vcc, 9, v{pc}
        v_cndmask_b32 v4, 0, 1, vcc
        v_mul_u32_u24 v5, 10, v4
        v_sub_u32 v5, v{pc}, v5
        v_lshrrev_b32 v6, 2, v5
        v_lshl_add_u32 v6, v6, 1, v4
        v_lshlrev_b32 v6, 11, v6
        v_and_b32 v7, 3, v5
        v_lshl_add_u32 v6, v7, 4, v6
        v_lshl_add_u32 v7, v4, 1, v7
        v_lshlrev_b32 v7, 4, v7
        v_add_u32 v7, 8192, v7
        v_cmp_gt_u32 vcc, 8, v5
        v_cndmask_b32 v6, v7, v6, vcc
        s_lshl_b32 s{sT}, s{sI}, 6
        v_add_u32 v{out}, s{sT}, v6''')

    def k2(u):
        def fn():
            cond = u == 1
            a = R.get(2)
            B = R.get(8)
            X = R.get(16)
            t = R.get(6, 2)
            st.I(f'''v_lshrrev_b32 v{t}, 2, v{g["l"]}
            v_mul_u32_u24 v{t}, 320, v{t}
            v_and_b32 v{t+1}, 3, v{g["l"]}''')
            if u == 0:
                st.I(f'''v_lshl_add_u32 v{a}, v{t+1}, 4, v{t}
                s_lshl_b32 s{sT}, s{sC}, 6
                s_add_u32 s{sT}, s{sT}, {L_MISC}
                v_add_u32 v{a}, s{sT}, v{a}
                s_lshl_b32 s{sT}, s{sC}, 11
                s_add_u32 s{sT}, s{sT}, s{sVB}''')
            else:
                st.I(f'''v_lshrrev_b32 v{a}, 1, v{t+1}
                v_lshl_add_u32 v{a}, v{a}, 5, v{t}
                v_and_b32 v{t+1}, 1, v{t+1}
                v_lshl_add_u32 v{a}, v{t+1}, 3, v{a}
                v_add_u32 v{a}, {L_MISC + 256}, v{a}
                s_add_u32 s{sT}, s{sVB}, 8192''')
            st.I(f'v_lshlrev_b32 v{a+1}, 6, v{g["n16"]}\nv_lshl_add_u32 v{a+1}, v{g["q"]}, 4, v{a+1}')
            if cond:
                st.wait_lg0()
                st.I(f's_cmp_eq_u32 s{sC}, {cfg.k2_extra}\ns_cbranch_scc0 L_k2_skip')
            for im in range(2):
                for hf in range(2):
                    st.D(f'ds_read_b64_tr_b16 {vr(B + 4*im + 2*hf, 2)}, v{a} offset:{hf*5120 + im*(8 if u == 0 else 16)}')
            st.wait_lg0()
            f = g['f32']
            for kbb in range(2):
                mf(X + 8*kbb, f[kbb][0], B, 0)
                mf(X + 8*kbb + 4, f[kbb][0], B + 4, 0)
                mf(X + 8*kbb, f[kbb][1], B + 4, 1)
                mf(X + 8*kbb + 4, f[kbb][2], B, 1)
            W, sc = g['W'][u], g['sc'] + u
            for kbb in range(2):
                for h in range(2):
                    wr, wi = W + 2*kbb + h, W + 4 + 2*kbb + h
                    for y in range(2):
                        xr, xi = X + 8*kbb + 2*h + y, X + 8*kbb + 4 + 2*h + y
                        if y == 0:
                            st.I(f'v_lshlrev_b32 v{t}, 16, v{wr}\nv_lshlrev_b32 v{t+1}, 16, v{wi}')
                        else:
                            st.I(f'v_and_b32 v{t}, s{sHIMASK}, v{wr}\nv_and_b32 v{t+1}, s{sHIMASK}, v{wi}')
                        st.I(f'''v_mul_f32 v{t}, v{sc}, v{t}
                        v_mul_f32 v{t+1}, v{sc}, v{t+1}
                        v_mul_f32 v{t+2+y}, v{xr}, v{t}
                        v_mul_f32 v{t+4+y}, v{xr}, v{t+1}
                        v_fma_f32 v{t+2+y}, -v{xi}, v{t+1}, v{t+2+y}
                        v_fma_f32 v{t+4+y}, v{xi}, v{t}, v{t+4+y}''')
                    st.I(f'v_cvt_pk_bf16_f32 v{B + 2*kbb + h}, v{t+2}, v{t+3}\nv_cvt_pk_bf16_f32 v{B + 4 + 2*kbb + h}, v{t+4}, v{t+5}')
            for ib in range(2):
                mf(X + 8*ib, B, f[ib][0], 0)
                mf(X + 8*ib + 4, B + 4, f[ib][0], 0)
                mf(X + 8*ib, B + 4, f[ib][2], 1)
                mf(X + 8*ib + 4, B, f[ib][1], 1)
            for ib in range(2):
                for r in range(4):
                    st.I(f'v_cvt_pk_bf16_f32 v{B + 4*ib + r}, v{X + 8*ib + r}, v{X + 8*ib + 4 + r}')
                st.V(f'buffer_store_dwordx4 {vr(B + 4*ib, 4)}, v{a+1}, {sr(sWS, 4)}, s{sT} offen offset:{ib*1024} sc1', 'vs', cond=cond)
            if cond:
                st.I('L_k2_skip:\ns_nop 7')
                R.put(*g['W'], g['sc'], *g['f32'][0], *g['f32'][1])
            else:
                st.I('s_nop 1')
            R.put(a, B, X, t)
        return fn

    def stage3():
        A = R.get(40)
        P = R.get(40)
        a = R.get()
        g['zp'] = R.get(12)
        st.I(f'''v_lshrrev_b32 v{a}, 2, v{g["l"]}
        v_mul_u32_u24 v{a}, 160, v{a}
        v_and_b32 v4, 3, v{g["l"]}
        v_lshl_add_u32 v{a}, v4, 3, v{a}
        v_add_u32 v{a}, {L_MISC}, v{a}''')
        C, S, _ = g['s3']

        def rd(mb):
            for t in range(2):
                for hf in range(2):
                    st.D(f'ds_read_b64_tr_b16 {vr(A + 8*mb + 4*t + 2*hf, 2)}, v{a} offset:{(32*t + 16*hf)*160 + 32*mb}', ('v', mb))
        rd(0)
        rd(1)
        for mb in range(5):
            st.wait_lg(('v', mb))
            for t in range(2):
                mf(P + 8*mb, A + 8*mb + 4*t, C + 4*t, t)
                mf(P + 8*mb + 4, A + 8*mb + 4*t, S + 4*t, t)
            if mb + 2 < 5:
                rd(mb + 2)
        st.I(f'v_mov_b32 v{g["zp"]+10}, 0\nv_mov_b32 v{g["zp"]+11}, 0')
        for mb in range(5):
            p, q_ = P + 8*mb, P + 8*mb + 4
            for h in range(2):
                st.I(f'''v_sub_f32 v{p+2*h}, v{p+2*h}, v{q_+2*h+1}
                v_add_f32 v{p+2*h+1}, v{p+2*h+1}, v{q_+2*h}
                v_cvt_pk_bf16_f32 v{g["zp"] + 2*mb + h}, v{p+2*h}, v{p+2*h+1}''')
        R.put(A, P, a, C, S)

    def lin_addr():
        if 'la' not in g:
            g['la'] = R.get()
            st.I(f's_lshl_b32 s{sT}, s{sC}, 10\nv_lshlrev_b32 v{g["la"]}, 4, v{g["l"]}\nv_add_u32 v{g["la"]}, s{sT}, v{g["la"]}')

    def zp_write():
        lin_addr()
        for tz in range(3):
            st.D(f'ds_write_b128 v{g["la"]}, {vr(g["zp"] + 4*tz, 4)} offset:{L_ZP + tz*4096}')
        st.wait_lg0()
        R.put(g['zp'])

    def g_setup():
        g['kf'] = R.get(10, 1)
        g['G'] = R.get(12)
        g['d0'] = R.get()
        st.I(f'''v_lshlrev_b32 v4, 1, v{g["q"]}
        v_add_u32 v4, s{sKB}, v4
        s_lshl_b32 s{sT}, s{sC}, 4
        v_add_u32 v{g["d0"]}, s{sT}, v{g["n16"]}
        v_mov_b32 v{g["G"]+10}, 0
        v_mov_b32 v{g["G"]+11}, 0''')
        for x in range(10):
            st.I(f'v_add_u32 v5, {8*(x >> 1) + (x & 1)}, v4\nv_cvt_f32_u32 v{g["kf"]+x}, v5')

    def g_gen(t):
        def fn():
            dd = R.get()
            w = R.get(6, 2)
            if t == 0:
                st.I(f'v_add_u32 v{dd}, 512, v{g["d0"]}')
            else:
                st.I(f's_add_u32 s{sT}, s{sJJ}, {t}\ns_and_b32 s{sT}, s{sT}, 7\ns_lshl_b32 s{sT}, s{sT}, 6\nv_add_u32 v{dd}, s{sT}, v{g["d0"]}')
            st.I(f'v_cvt_f32_u32 v{dd}, v{dd}\nv_mul_f32 v{dd}, {f32(1/576)}, v{dd}')
            for x in range(0, 10, 2):
                st.I(f'''v_mul_f32 v{w}, v{g["kf"]+x}, v{dd}
                v_mul_f32 v{w+1}, v{g["kf"]+x+1}, v{dd}
                v_fract_f32 v{w}, v{w}
                v_fract_f32 v{w+1}, v{w+1}
                v_cos_f32 v{w+2}, v{w}
                v_sin_f32 v{w+3}, v{w}
                v_cos_f32 v{w+4}, v{w+1}
                v_sin_f32 v{w+5}, v{w+1}
                v_cvt_pk_bf16_f32 v{g["G"]+x}, v{w+2}, -v{w+3}
                v_cvt_pk_bf16_f32 v{g["G"]+x+1}, v{w+4}, -v{w+5}''')
            R.put(dd, w)
        return fn

    def g_write():
        lin_addr()
        for tz in range(3):
            st.D(f'ds_write_b128 v{g["la"]}, {vr(g["G"] + 4*tz, 4)} offset:{L_G + tz*4096}')

    T = cfg.ab_ticks
    side[-1] += [lanes, w_dma, gen_dft, gen_s1]
    ctx['pre0'] = [dft_setup]
    cuts = cfg.dft_cuts
    for x in range(len(cuts) - 1):
        side[x].append(dft(cuts[x], cuts[x+1]))
    side[1].append(w_frags)
    side[len(cuts) - 2].append(z_write)
    side[T['s1']].append(stage1)
    side[T['uflag']].append(flag('us', WS_FU))
    side[T['gens']] += [gen_f32]
    side[T['gens'] + 1] += [gen_s3, g_setup]
    side[T['ug']].append(gather('ug', WS_FU, WS_U, u_lane))
    side[T['k2'] - 1].append(lambda: st.wait_vm('ug'))
    side[T['k2']].append(k2(0))
    side[T['k2'] + 1].append(k2(1))
    side[T['vflag']].append(flag('vs', WS_FV))
    side[T['vg']].append(gather('vg', WS_FV, WS_V, v_lane))
    side[T['s3'] - 1].append(lambda: st.wait_vm('vg'))
    side[T['s3']].append(stage3)
    side[max(27, T['s3'])].append(zp_write)
    for t in range(9):
        side[26 + 3*t if t else 25].append(g_gen(t))
        first[28 + 3*t].append(g_write)
```

```python
import re

_REG = re.compile(r'^(-)?(?:abs\()?([vsa])(?:(\d+)|\[(\d+):(\d+)\])\)?$')


def regs_of(tok):
    tok = tok.strip()
    if tok == 'vcc':
        return {('s', 106), ('s', 107)}
    if tok == 'exec':
        return {('s', 126), ('s', 127)}
    if tok == 'm0':
        return {('s', 124)}
    m = _REG.match(tok)
    if not m:
        return set()
    k = m.group(2)
    if m.group(3) is not None:
        return {(k, int(m.group(3)))}
    return {(k, r) for r in range(int(m.group(4)), int(m.group(5)) + 1)}


TRANS = ('v_exp_f32', 'v_log_f32', 'v_rcp_f32', 'v_rsq_f32', 'v_sqrt_f32', 'v_sin_f32', 'v_cos_f32')


class Ins:
    def __init__(self, text):
        self.text = text
        t = text.split(';')[0].strip()
        self.label = t.endswith(':')
        self.directive = t.startswith('.')
        self.op = ''
        self.w = set()
        self.r = set()
        self.srcc = set()
        self.ab = set()
        self.data = set()
        if self.label or self.directive or not t:
            return
        parts = t.split(None, 1)
        op = parts[0]
        self.op = re.sub(r'_(e32|e64|dpp|sdwa)$', '', op)
        self.dpp = op.endswith('_dpp') or 'quad_perm' in t or 'row_' in t
        ops = []
        if len(parts) > 1:
            depth = 0
            cur = ''
            for ch in parts[1]:
                if ch in '[(':
                    depth += 1
                if ch in '])':
                    depth -= 1
                if ch == ',' and depth == 0:
                    ops.append(cur.strip())
                    cur = ''
                else:
                    cur += ch
            ops.append(cur.strip())
            ops[-1] = ops[-1].split()[0] if ops[-1] else ''
        self.mods = t
        o = self.op
        R = [regs_of(x) for x in ops]
        self.valu = o.startswith('v_') and not o.startswith('v_mfma')
        self.mfma = o.startswith('v_mfma')
        self.trans = o in TRANS
        self.vmem = o.startswith(('buffer_', 'global_'))
        self.ds = o.startswith('ds_')
        self.salu = o.startswith('s_')
        self.dot = o.startswith('v_dot')
        if self.mfma:
            self.w = R[0]
            self.ab = R[1] | R[2]
            self.srcc = R[3]
            self.r = self.ab | self.srcc
        elif self.valu:
            self.w = set(R[0])
            rest = R[1:]
            if o.startswith(('v_add_co', 'v_sub_co', 'v_addc_co', 'v_subb_co')):
                self.w |= R[1]
                rest = R[2:]
            for x in rest:
                self.r |= x
            if o.startswith(('v_fmac', 'v_mac')) or 'permlane' in o:
                self.r |= R[0]
            if 'permlane' in o and 'swap' in o:
                self.w |= R[1]
            if o == 'v_cndmask_b32' and len(ops) == 3:
                self.r |= regs_of('vcc')
            if o == 'v_writelane_b32':
                self.r |= R[0]
        elif self.vmem:
            lds = bool(re.search(r'\blds\b', t))
            if o in ('buffer_inv', 'buffer_wbl2'):
                pass
            elif lds:
                for x in R:
                    self.r |= x
                self.r |= {('s', 124)}
                self.ldsdma = True
            elif o.startswith('buffer_load'):
                self.w = R[0]
                for x in R[1:]:
                    self.r |= x
            elif o.startswith('global_load'):
                self.w = R[0]
                for x in R[1:]:
                    self.r |= x
            elif o.startswith('buffer_'):
                self.data = R[0]
                for x in R:
                    self.r |= x
                if 'atomic' in o and 'sc0' in t:
                    self.w = R[0]
            else:
                self.data = R[1]
                for x in R:
                    self.r |= x
        elif self.ds:
            if o.startswith(('ds_read', 'ds_bpermute', 'ds_permute', 'ds_swizzle')):
                self.w = R[0]
                for x in R[1:]:
                    self.r |= x
            else:
                for x in R:
                    self.r |= x
        elif self.salu:
            if o.startswith(('s_cmp', 's_cbranch', 's_branch', 's_waitcnt', 's_nop', 's_barrier', 's_endpgm',
                             's_sleep', 's_setprio', 's_bitcmp')):
                for x in R:
                    self.r |= x
            elif 'saveexec' in o:
                self.w = R[0] | regs_of('exec')
                self.r = R[1] | regs_of('exec')
            else:
                self.w = R[0]
                for x in R[1:]:
                    self.r |= x

    def states(self):
        if self.label or self.directive or not self.op:
            return 0
        if self.op == 's_nop':
            return int(self.text.split()[1].split(';')[0], 0) + 1
        return 1


def need(p, c):
    n = 0
    vw = {x for x in p.w if x[0] in 'va'}
    sw = {x for x in p.w if x[0] == 's'}
    if p.mfma:
        if c.mfma:
            if vw & c.ab:
                n = max(n, 8)
            if vw & c.srcc and vw != c.srcc:
                n = max(n, 6)
            if vw & c.w and not (vw & c.srcc):
                n = max(n, 6)
        elif c.valu and vw & (c.r | c.w):
            n = max(n, 8)
        elif (c.vmem or c.ds) and vw & (c.r | c.w):
            n = max(n, 8)
        if c.valu and p.srcc & c.w:
            n = max(n, 3)
    if p.valu:
        if c.mfma and vw & c.r:
            n = max(n, 2)
        if p.trans and c.valu and vw & c.r:
            n = max(n, 1)
        if c.valu and c.op in ('v_readfirstlane_b32', 'v_readlane_b32') and vw & c.r:
            n = max(n, 1)
        if c.valu and ('permlane' in c.op or c.dpp) and vw & c.r:
            n = max(n, 2)
        if c.valu and sw & c.r:
            n = max(n, 4 if c.op in ('v_readlane_b32', 'v_writelane_b32') else 2)
        if c.vmem and sw & c.r:
            n = max(n, 5)
        if c.salu and sw & c.r:
            n = max(n, 1)
        if p.dot and (c.valu or c.mfma or c.vmem or c.ds) and vw & (c.r | c.w):
            if not (c.dot and c.op == p.op and c.w == vw):
                n = max(n, 3)
    if p.salu and ('s', 124) in p.w and c.vmem and getattr(c, 'ldsdma', False):
        n = max(n, 1)
    if p.vmem and len(p.data) >= 3 and p.data & c.w:
        n = max(n, 2)
    return n


def pad_hazards(lines, report=None):
    out = []
    for text in lines:
        c = Ins(text)
        if c.op:
            dist = 0
            add = 0
            for p in reversed(out):
                if dist >= 12:
                    break
                if p.op:
                    k = need(p, c)
                    if k - dist > add:
                        add = k - dist
                        if report is not None:
                            report.append((p.text.strip(), c.text.strip(), add))
                dist += p.states()
            if add > 0:
                out.append(Ins(f'  s_nop {add-1}'))
        out.append(c)
    return [i.text for i in out]


class Stream:
    def __init__(self):
        self.lines = []
        self.vm = []
        self.lg = []

    def I(self, text):
        for t in text.split('\n'):
            t = t.strip()
            if t:
                self.lines.append(t if t.endswith(':') else '  ' + t)

    def V(self, text, tag=None, cond=False):
        self.I(text)
        self.vm.append((tag, cond))

    def D(self, text, tag=None, cond=False):
        self.I(text)
        self.lg.append((tag, cond))

    @staticmethod
    def _count(q, tags):
        tags = tags if isinstance(tags, (list, set)) else [tags]
        idx = max((k for k, (t, _) in enumerate(q) if t in tags), default=-1)
        if idx < 0:
            return None, idx
        return sum(1 for (_, c) in q[idx+1:] if not c), idx

    def wait_vm(self, tags):
        n, idx = self._count(self.vm, tags)
        if n is None:
            return
        self.I(f's_waitcnt vmcnt({min(n, 63)})')
        self.vm = self.vm[idx+1:]

    def wait_lg(self, tags):
        n, idx = self._count(self.lg, tags)
        if n is None:
            return
        self.I(f's_waitcnt lgkmcnt({min(n, 15)})')
        self.lg = self.lg[idx+1:]

    def wait_lg0(self):
        if self.lg:
            self.I('s_waitcnt lgkmcnt(0)')
        self.lg = []

    def wait_vm0(self):
        if self.vm:
            self.I('s_waitcnt vmcnt(0)')
        self.vm = []

    def fork(self):
        s = Stream()
        s.vm = list(self.vm)
        s.lg = list(self.lg)
        return s


class Alloc:
    def __init__(self, lo, hi, kind='v'):
        self.free = set(range(lo, hi))
        self.kind = kind
        self.live = {}

    def get(self, n=1, align=None, name=None):
        align = align or (1 if n == 1 else 2 if n == 2 else 4)
        for b in sorted(self.free):
            if b % align == 0 and all(b+k in self.free for k in range(n)):
                for k in range(n):
                    self.free.discard(b+k)
                self.live[b] = n
                return b
        raise RuntimeError(f'out of {self.kind} registers for {n} ({name})')

    def take(self, b, n):
        for k in range(n):
            assert b+k in self.free, (b, k)
            self.free.discard(b+k)
        self.live[b] = n
        return b

    def put(self, *bases):
        for b in bases:
            n = self.live.pop(b)
            for k in range(n):
                self.free.add(b+k)


def vr(b, n=1):
    return f'v{b}' if n == 1 else f'v[{b}:{b+n-1}]'


def sr(b, n=1):
    return f's{b}' if n == 1 else f's[{b}:{b+n-1}]'


def f32(x):
    import struct
    return '0x%08x' % struct.unpack('<I', struct.pack('<f', x))[0]
```

```python
import math
import sys
from asmlib import Stream, Alloc, pad_hazards, vr, sr, f32

KN = 'parallel_sum__spectral_gfnet__dense_activation_silu__prompt_kernel'
LOG2E = 1.4426950408889634
LN2 = 0.6931471805599453

L_H, L_RING, L_MISC, L_TOTAL = 0, 73728, 147456, 163840
L_G, L_ZP, L_DUMP, L_PS = 0, 12288, 24576, 40960
GR = 24576

WS_FU, WS_FV, WS_FP = 0, 4096, 8192
WS_U = 65536
WS_V = WS_U + 256*10240
WS_P = WS_V + 256*10240
WS_DBG = 0x4000000
WS_SIZE = 268435456

sX, sW1, sW2, sWS, sOUT, sWR, sWI, sDBG = 24, 28, 32, 36, 40, 44, 48, 52
sJ, sI, sJJ, sW, sC, sRHO = 56, 57, 58, 59, 60, 61
sT = 62
sONES, sHIMASK = 70, 71
XR = 20
SPIN_MAX = 1 << 18


class Cfg:
    abranch = True
    stamps = False
    dump = None
    rot = 9
    R = 2
    w2_touch_step = -1
    w1_touch = False
    outflags = ''
    prio_helper = 0
    no_dma = False
    w_first = False
    direct_from = 0
    pw_split = True
    hw_rel = (5, 0)
    ps_rel = None
    ps_wait = 10
    ps_flags = 'sc1'
    no_pflag = False
    no_pwait = False
    dma_cap = None
    hw_w = 128
    hprof = None
    ns = 3
    ring = L_RING
    hw_mode = 1
    no_bar = False
    no_ps = False
    no_hw = False
    no_read = False
    no_post = False
    no_side = False
    no_mfma = False
    prio_compute = 0


def srd(st, d, base, nbytes):
    st.I(f's_mov_b32 s{d}, s{base}\ns_mov_b32 s{d+1}, s{base+1}\ns_mov_b32 s{d+2}, {nbytes}\ns_mov_b32 s{d+3}, 0x00020000')


def stamp(st, cfg, idx, vp=2, va=1):
    if not cfg.stamps:
        return
    st.wait_lg0()
    st.I(f's_memrealtime s[94:95]\ns_memtime s[96:97]\ns_waitcnt lgkmcnt(0)')
    st.I(f's_lshl_b32 s98, s2, 3\ns_add_u32 s98, s98, s{sW}\ns_lshl_b32 s98, s98, 8\ns_add_u32 s98, s98, {WS_DBG + 0x1000000 + idx*8}')
    st.I(f's_mov_b64 exec, 1\nv_mov_b32 v{vp}, s94\nv_mov_b32 v{vp+1}, s96\nv_mov_b32 v{va}, 0')
    st.V(f'buffer_store_dwordx2 {vr(vp, 2)}, v{va}, {sr(sWS, 4)}, s98 offen')
    st.I('s_mov_b64 exec, -1')


def prologue_common(st, cfg):
    st.I('s_cmp_ge_u32 s2, 256\ns_cbranch_scc1 L_end')
    st.I('s_load_dwordx16 s[4:19], s[0:1], 0\ns_load_dwordx2 s[20:21], s[0:1], 64')
    st.I(f'''v_lshrrev_b32 v4, 6, v0
    v_and_b32 v5, 63, v0
    v_readfirstlane_b32 s{sW}, v4
    s_and_b32 s{sT}, s2, {cfg.R-1}
    s_mul_i32 s{sT}, s{sT}, {32//cfg.R}
    s_lshr_b32 s{sI}, s2, {3 + cfg.R.bit_length()-1}
    s_add_u32 s{sI}, s{sI}, s{sT}
    s_and_b32 s{sJ}, s2, {7 & ~(cfg.R-1)}
    s_bfe_u32 s{sT}, s2, {3 + ((cfg.R.bit_length()-1) << 16)}
    s_add_u32 s{sJ}, s{sJ}, s{sT}
    v_lshrrev_b32 v6, 3, v5
    v_and_b32 v7, 7, v5
    v_mul_u32_u24 v8, 36864, v6
    v_lshl_add_u32 v8, v7, 4, v8
    s_lshl_b32 s{sT}, s{sW}, 8
    s_add_u32 s{sT}, s{sT}, s{sI}
    s_mul_i32 s{sT}, s{sT}, 1152
    s_waitcnt lgkmcnt(0)''')
    srd(st, sX, 4, 2048*1152)
    for u in range(9):
        st.V(f'buffer_load_dwordx4 {vr(XR+4*u, 4)}, v8, {sr(sX, 4)}, s{sT} offen offset:{128*u}', ('x', u))
    srd(st, sW1, 12, 576*9216)
    srd(st, sW2, 14, 4608*1152)
    srd(st, sWS, 20, WS_SIZE)
    srd(st, sOUT, 16, 2048*1152)
    srd(st, sWR, 6, 2048*578)
    srd(st, sWI, 8, 2048*578)
    srd(st, sDBG, 18, 256)
    st.I(f'''s_add_u32 s{sJJ}, s{sJ}, s{sI}
    s_and_b32 s{sJJ}, s{sJJ}, 7
    s_and_b32 s{sC}, s{sW}, 3
    s_mov_b32 s{sONES}, 0x3f803f80
    s_mov_b32 s{sHIMASK}, 0xffff0000''')


def rho_init(st, cfg):
    if cfg.rot == 9:
        st.I(f's_mul_i32 s{sT}, s{sI}, 7282\ns_lshr_b32 s{sT}, s{sT}, 16\ns_mul_i32 s{sT}, s{sT}, 9\ns_sub_u32 s{sRHO}, s{sI}, s{sT}')
    elif cfg.rot == 3:
        st.I(f's_mul_i32 s{sT}, s{sI}, 21846\ns_lshr_b32 s{sT}, s{sT}, 16\ns_mul_i32 s{sT}, s{sT}, 3\ns_sub_u32 s{sRHO}, s{sI}, s{sT}\ns_mul_i32 s{sRHO}, s{sRHO}, 3')
    else:
        st.I(f's_mov_b32 s{sRHO}, 0')


def layernorm(st, after_load=None):
    a, b, t0, t1, wa, wb = 10, 11, 12, 13, 14, 15
    st.I(f'''s_lshr_b32 s{sT}, s{sW}, 1
    s_lshl_b32 s{sT}, s{sT}, 10
    s_and_b32 s{sT+1}, s{sW}, 1
    s_lshl_b32 s{sT+1}, s{sT+1}, 7
    s_add_u32 s{sT}, s{sT}, s{sT+1}
    v_xor_b32 v{wa}, v6, v7
    v_lshlrev_b32 v{wa}, 4, v{wa}
    v_and_b32 v{t0}, 3, v7
    v_lshl_add_u32 v{wa}, v{t0}, 8, v{wa}
    v_lshrrev_b32 v{t0}, 2, v7
    v_lshl_add_u32 v{wa}, v{t0}, 12, v{wa}
    v_add_u32 v{wa}, s{sT}, v{wa}
    v_add_u32 v{wb}, 8192, v{wa}''')
    for u in range(9):
        st.wait_vm(('x', u))
        for k in range(4):
            x = XR + 4*u + k
            first = (u == 0 and k == 0)
            st.I(f'v_dot2_f32_bf16 v{a}, v{x}, s{sONES}, {"0" if first else "v%d" % a}')
            st.I(f'v_dot2_f32_bf16 v{b}, v{x}, v{x}, {"0" if first else "v%d" % b}')
    if after_load:
        after_load()
    for m in ('quad_perm:[1,0,3,2]', 'quad_perm:[2,3,0,1]', 'row_half_mirror'):
        st.I(f'v_add_f32_dpp v{a}, v{a}, v{a} {m} row_mask:0xf bank_mask:0xf')
        st.I(f'v_add_f32_dpp v{b}, v{b}, v{b} {m} row_mask:0xf bank_mask:0xf')
    st.I(f'''v_mul_f32 v{a}, {f32(1/576)}, v{a}
    v_mul_f32 v{b}, {f32(1/576)}, v{b}
    v_fma_f32 v{b}, -v{a}, v{a}, v{b}
    v_max_f32 v{b}, 0, v{b}
    v_add_f32 v{b}, {f32(1e-5)}, v{b}
    v_rsq_f32 v{b}, v{b}
    v_mul_f32 v{b}, {f32(LOG2E)}, v{b}
    v_mul_f32 v{a}, v{a}, v{b}''')
    for u in range(9):
        for k in range(4):
            x = XR + 4*u + k
            st.I(f'''v_lshlrev_b32 v{t0}, 16, v{x}
            v_and_b32 v{t1}, s{sHIMASK}, v{x}
            v_fma_f32 v{t0}, v{t0}, v{b}, -v{a}
            v_fma_f32 v{t1}, v{t1}, v{b}, -v{a}
            v_cvt_pk_bf16_f32 v{x}, v{t0}, v{t1}''')
        if u < 8:
            st.D(f'ds_write_b128 v{wa}, {vr(XR+4*u, 4)} offset:{u*8192}')
        else:
            st.D(f'ds_write_b128 v{wb}, {vr(XR+4*u, 4)} offset:{(u-1)*8192}')


BF, ZF, ACC, AF = 112, 88, (56, 72), 32
vTA, vTB, vPK = 16, 6, 20
vXF = 4
vWA = 8
vWB = (18, 19, 2, 3)
vGR = 1
vHW, vHR, vPS, vHW2 = 28, 29, 30, 5


def bfrag(m, rb2):
    return BF + 8*m + 4*rb2 if m < 18 else ZF + 8*(m-18) + 4*rb2


def silu_ops(acc):
    ops = []
    for rb2 in range(2):
        for cb in range(2):
            a = acc + 4*(2*cb+rb2)
            d = vPK + 4*rb2 + 2*cb
            t = [vTA, vTA+1, vTB, vTB+1]
            ops += [(f'v_exp_f32 v{t[e]}, -v{a+e}', 8) for e in range(4)]
            ops += [(f'v_add_f32 v{t[e]}, 1.0, v{t[e]}', 4) for e in range(4)]
            ops += [(f'v_rcp_f32 v{t[e]}, v{t[e]}', 8) for e in range(4)]
            ops += [(f'v_mul_f32 v{t[e]}, v{a+e}, v{t[e]}', 4) for e in range(4)]
            ops += [(f'v_cvt_pk_bf16_f32 v{d+h}, v{t[2*h]}, v{t[2*h+1]}', 2) for h in range(2)]
        ops.append(('HW', rb2))
    return ops


def pack_ops(acc):
    ops = []
    for rb2 in range(2):
        for cb in range(2):
            for h in range(2):
                a = acc + 4*(2*cb+rb2) + 2*h
                ops.append((f'v_cvt_pk_bf16_f32 v{vPK + 4*rb2 + 2*cb + h}, v{a}, v{a+1}', 4))
        ops.append(('PS', rb2))
    return ops


def compute_role(st, cfg):
    sCH, sRG, sP, sFL, sR, sTW1, sTW2 = 72, 73, 74, 75, 76, 77, 78
    vT1, vT2 = 92, 96
    nt = cfg.R
    st.I(f'''s_and_b32 s{sT+2}, s{sI}, {32//cfg.R - 1}
    s_mul_i32 s{sT+2}, s{sT+2}, {18*cfg.R}
    s_mul_i32 s{sTW1}, s{sT+2}, 9216
    s_mul_i32 s{sT+1}, s{sJ}, 1152
    s_add_u32 s{sTW1}, s{sTW1}, s{sT+1}
    s_mul_i32 s{sT+1}, s{sJ}, 576
    s_add_u32 s{sT+1}, s{sT+1}, s{sT+2}
    s_mul_i32 s{sTW2}, s{sT+1}, 1152''')
    for x in range(nt):
        st.I(f'''v_add_u32 v9, {256*x}, v0
        v_min_u32 v9, {162*cfg.R - 1}, v9
        v_mul_u32_u24 v10, 7282, v9
        v_lshrrev_b32 v10, 16, v10
        v_mul_u32_u24 v11, 9, v10
        v_sub_u32 v11, v9, v11
        v_mul_u32_u24 v10, 9216, v10
        v_lshl_add_u32 v{vT1+x}, v11, 7, v10
        v_lshlrev_b32 v{vT2+x}, 7, v9''')
    nt = (162*cfg.R + 255)//256
    st.I(f'''s_getpc_b64 s[4:5]
    L_pc:
    s_add_u32 s4, s4, {KN}-L_pc
    s_addc_u32 s5, s5, -1
    s_and_b32 s{sT+2}, s{sI}, 1
    s_lshl_b32 s{sT+2}, s{sT+2}, 8
    v_add_u32 v11, s{sT+2}, v0
    v_lshlrev_b32 v11, 7, v11
    v_min_u32 v11, L_end-{KN}, v11''')
    st.V('global_load_dword v89, v11, s[4:5]')

    def touch(which):
        for x in range(nt):
            if which == 1:
                st.V(f'buffer_load_dword v88, v{vT1+x}, {sr(sW1, 4)}, s{sTW1} offen')
            else:
                st.V(f'buffer_load_dword v90, v{vT2+x}, {sr(sW2, 4)}, s{sTW2} offen')
    st.I(f'''s_lshl_b32 s{sT}, s{sJ}, 5
    s_add_u32 s{sT}, s{sT}, s{sI}
    s_lshl_b32 s{sT}, s{sT}, 4
    s_mul_i32 s{sT+1}, s{sI}, {9*128}
    s_lshl_b32 s{sT+2}, s{sJ}, 4
    s_add_u32 s{sT+1}, s{sT+1}, s{sT+2}
    s_add_u32 s{sFL}, s{sT+1}, {WS_FP}
    v_lshlrev_b32 v9, 7, v5
    v_add_u32 v9, s{sFL}, v9
    v_subrev_u32 v10, 9, v5
    v_lshlrev_b32 v10, 12, v10
    v_add_u32 v10, s{sT}, v10
    v_cmp_gt_u32 vcc, 9, v5
    v_cndmask_b32 v9, v10, v9, vcc
    v_mov_b32 v12, 0
    v_mov_b32 v13, 0
    v_mov_b32 v14, 0
    v_mov_b32 v15, 0
    s_cmp_eq_u32 s{sW}, 0
    s_cbranch_scc0 L_c_noclear
    s_mov_b64 exec, 0x7ff''')
    st.V(f'buffer_store_dwordx4 v[12:15], v9, {sr(sWS, 4)}, 0 offen sc1', 'clr', cond=True)
    st.I('s_mov_b64 exec, -1\nL_c_noclear:\ns_nop 1')
    st.I(f'''s_and_b32 s{sCH}, s{sC}, 1
    s_lshr_b32 s{sRG}, s{sC}, 1
    s_lshl_b32 s{sT}, s{sC}, 2
    s_add_u32 s{sFL}, s{sFL}, s{sT}
    s_lshl_b32 s{sP}, s{sI}, 3
    s_add_u32 s{sP}, s{sP}, s{sJ}
    s_mul_i32 s{sP}, s{sP}, {9*8192}
    s_add_u32 s{sP}, s{sP}, {WS_P}''')
    layernorm(st, (lambda: touch(1)) if cfg.w1_touch else None)
    RQ, RR, RC, RL, T0, T1, T2 = 60, 61, 62, 63, 64, 65, 66
    st.I(f'''v_and_b32 v{RL}, 63, v0
    v_lshrrev_b32 v{RQ}, 4, v{RL}
    v_bfe_u32 v{RR}, v{RL}, 2, 2
    v_and_b32 v{RC}, 3, v{RL}''')
    for natural in (True, False):
        for cb in range(2):
            for hf in range(2 if natural else 1):
                lo, hi = (vWA + 2*cb + hf, vWA + 4 + 2*cb + hf) if natural else (vWB[cb], vWB[2+cb])
                if natural:
                    st.I(f'''v_xor_b32 v{T0}, {hf}, v{RQ}
                    v_and_b32 v{T0}, 1, v{T0}
                    v_lshlrev_b32 v{T1}, 3, v{RQ}
                    v_add3_u32 v{T1}, v{T1}, v{RR}, {4*hf}''')
                else:
                    st.I(f'''v_lshrrev_b32 v{T0}, 1, v{RQ}
                    v_xor_b32 v{T0}, v{T0}, v{RQ}
                    v_and_b32 v{T0}, 1, v{T0}
                    v_lshl_add_u32 v{T1}, v{RQ}, 2, v{RR}''')
                st.I(f'''v_lshlrev_b32 v{T0}, 1, v{T0}
                v_lshrrev_b32 v{T2}, 1, v{RR}
                v_or_b32 v{T0}, v{T0}, v{T2}
                s_lshl_b32 s{sT}, s{sCH}, 1
                s_add_u32 s{sT}, s{sT}, {cb}
                v_xor_b32 v{T0}, s{sT}, v{T0}
                v_lshlrev_b32 v{T0}, 5, v{T0}
                v_lshl_add_u32 v{T0}, v{T1}, 7, v{T0}
                v_lshl_add_u32 v{T0}, v{RC}, 3, v{T0}
                v_add_u32 v{lo}, {cfg.ring}, v{T0}
                v_add_u32 v{hi}, {cfg.ring + 15*4096}, v{T0}''')
    st.I(f'''s_lshl_b32 s{sT}, s{sRG}, 11
    v_and_b32 v{T0}, 15, v{RL}''')
    for par in range(2):
        st.I(f'''v_add_u32 v{T1}, {4*par}, v{RQ}
        v_xor_b32 v{T1}, v{T1}, v{T0}
        v_lshlrev_b32 v{T1}, 4, v{T1}
        v_lshl_add_u32 v{T1}, v{RQ}, 8, v{T1}
        v_add_u32 v{vXF+par}, s{sT}, v{T1}
        v_add_u32 v{vXF+2+par}, {14*4096}, v{vXF+par}''')
    st.I(f'''v_lshlrev_b32 v{T0}, 4, v{RL}
    v_add_u32 v{vHR}, s{sT}, v{T0}
    s_lshl_b32 s{sT+1}, s{sCH}, 12
    v_add_u32 v{vHW}, s{sT+1}, v{vHR}
    v_add_u32 v31, {14*4096}, v{vHR}
    s_lshl_b32 s{sT+1}, s{sC}, 11
    v_add_u32 v{vPS}, s{sT+1}, v{T0}
    s_lshl_b32 s{sT+1}, s{sCH}, 11
    v_add_u32 v{vGR}, s{sT+1}, v{T0}''')
    st.I(f's_cmp_eq_u32 s{sW}, 0\ns_cbranch_scc0 L_c_nosig\ns_waitcnt vmcnt({nt if cfg.w1_touch else 0})')
    st.I(f's_lshl_b32 s{sT}, s{sJ}, 2\ns_mov_b64 exec, 1\nv_mov_b32 v64, 0\nv_mov_b32 v65, 1')
    st.V(f'buffer_atomic_add v65, v64, {sr(sDBG, 4)}, s{sT} offen sc1', cond=True)
    st.I('s_mov_b64 exec, -1\nL_c_nosig:')
    if cfg.prio_compute:
        st.I(f's_setprio {cfg.prio_compute}')
    st.wait_lg0()
    stamp(st, cfg, 1, 68, 67)
    st.I('s_barrier')

    def rd_w(natural, si, k, buf):
        out = []
        k = ((3*si + k//6) % cfg.ns)*6 + k % 6
        for cb in range(2):
            for hf in range(2):
                hi = k >= 15
                base = vWA + 2*cb + hf + (4 if hi else 0) if natural else vWB[cb + (2 if hi else 0)]
                off = (k - (15 if hi else 0))*4096 + (0 if natural else 2048*hf)
                d = AF + 8*buf + 4*cb + 2*hf
                out.append(f'ds_read_b64_tr_b16 {vr(d, 2)}, v{base} offset:{off}')
        return out

    def rd_g(kz, buf):
        return [f'ds_read_b128 {vr(AF + 8*buf + 4*cb, 4)}, v{vGR} offset:{L_G + kz*4096 + cb*1024}' for cb in range(2)]

    def rd_x(m, rb2):
        hi = m >= 14
        return f'ds_read_b128 {vr(bfrag(m, rb2), 4)}, v{vXF + (m & 1) + (2 if hi else 0)} offset:{(m - (14 if hi else 0))*4096 + rb2*1024}'

    def rd_h(m, rb2):
        hi = m >= 14
        return f'ds_read_b128 {vr(bfrag(m, rb2), 4)}, v{31 if hi else vHR} offset:{(m - (14 if hi else 0))*4096 + rb2*1024}'

    def rd_z(kz, rb2):
        return f'ds_read_b128 {vr(bfrag(18+kz, rb2), 4)}, v{vHR} offset:{L_ZP + kz*4096 + rb2*1024}'

    nkb = 21 if cfg.abranch else 18
    steps = [('A', t) for t in range(9)] + [('B', t) for t in range(9)]
    ks = []
    for si, (ph, t) in enumerate(steps):
        for k in range(18 if ph == 'A' else nkb):
            ks.append((si, ph, t, k))
    pos = {(si, k): n for n, (si, ph, t, k) in enumerate(ks)}

    def areads(n):
        si, ph, t, k = ks[n]
        return rd_w(ph == 'A', si, k, n % 3) if k < 18 else rd_g(k-18, n % 3)

    bar_mid, bar_pre = set(), set()
    for n, (si, ph, t, k) in enumerate(ks):
        if n and k < 18 and k % 6 == 0:
            (bar_pre.add(n-3) if ks[n-1][3] >= 18 else bar_mid.add(n-2))

    extra = {n: [] for n in range(len(ks))}
    for m in range(2, 18):
        extra[m-2] += [(rd_x(m, 0), ('b', m)), (rd_x(m, 1), ('b', m))]
    a9 = pos[(8, 0)]
    for m in range(14):
        extra[a9 + m + 1] += [(rd_h(m, 0), ('b', m)), (rd_h(m, 1), ('b', m))]
    b1 = pos[(9, 0)]
    for m in range(14, 18):
        extra[b1 + m - (2 if m < 16 else 3)] += [(rd_h(m, 0), ('b', m)), (rd_h(m, 1), ('b', m))]
    if cfg.abranch:
        for kz in range(3):
            extra[b1 + 15 + kz] += [(rd_z(kz, 0), ('b', 18+kz)), (rd_z(kz, 1), ('b', 18+kz))]

    for n in range(2):
        for x in areads(n):
            st.D(x, ('a', n))
        for rb2 in range(2):
            st.D(rd_x(n, rb2), ('b', n))

    post = []
    pend = []
    for n, (si, ph, t, k) in enumerate(ks):
        acc = ACC[si & 1]
        if k == 0:
            if si == 9:
                st.wait_vm0()
            if si >= 1:
                pacc = ACC[(si-1) & 1]
                post = silu_ops(pacc) if si <= 9 else pack_ops(pacc)
        if n in bar_pre and not cfg.no_bar:
            st.wait_lg('hw')
            if ph == 'B' and t - 1 >= cfg.direct_from and cfg.ps_wait > 10 and si < 17:
                st.wait_vm0()
            st.I('s_barrier')
        nxt = [(x, ('a', n+2)) for x in areads(n+2)] if n + 2 < len(ks) else []
        gaps = [[], [], [], []]
        if n in bar_mid:
            slots = [1, 2, 2, 3]
        elif n + 1 in bar_mid:
            slots = [0, 0, 1, 1]
        else:
            slots = [0, 1, 2, 3] if len(nxt) == 4 else [0, 2]
        for x, it in enumerate(nxt):
            gaps[slots[x]].append(('D',) + it)
        for x, it in enumerate(extra[n]):
            g = min(range(4), key=lambda y: (len(gaps[y]), y)) if n not in bar_mid else (2 + x % 2)
            gaps[g].append(('D',) + it)
        per_gap = 2 if si == 9 else 1
        for g in range(4):
            if pend:
                kind = pend[0][0]
                ok = (k % 6, g) == cfg.hw_rel and k < 18
                if kind == 'PS':
                    ok = not (n in bar_mid and g <= 1) if cfg.ps_rel is None or si == 17 else ((k % 6, g) == cfg.ps_rel and k < 18)
                if kind == 'HW' and si == 9 and pend[0][2] == 9:
                    ok = (k, g) in ((5, 0), (6, 0), (9, 1), (9, 2), (9, 3))
                while ok and pend and pend[0][0] == kind:
                    it = pend.pop(0)
                    if cfg.w_first or kind == 'PS':
                        gaps[g].insert(sum(1 for y in gaps[g] if y[0] in ('HW', 'PW')), it)
                    else:
                        gaps[g].insert(sum(1 for y in gaps[g] if y[0] != 'V'), it)
                    if kind != 'PW' or cfg.pw_split:
                        break
            if not post or (k < 1 and not (si == 9 and g >= 1)):
                continue
            cnt = 0
            while post:
                o, c = post[0]
                if o in ('HW', 'PS'):
                    if o == 'PS' and t - 1 < cfg.direct_from:
                        o = 'PW'
                    pend.append((o, c, si))
                    post.pop(0)
                    break
                load = 4*sum(1 for y in gaps[g] if y[0] != 'V') + sum(y[2] for y in gaps[g] if y[0] == 'V')
                if cnt >= per_gap and not (c == 2 and cnt < per_gap + 1 and g >= 2) and load >= 8:
                    break
                gaps[g].append(('V', o, max(c, 4)))
                post.pop(0)
                cnt += 1
        for x in range(4):
            cb, rb2 = x >> 1, x & 1
            d = acc + 4*(2*cb + rb2)
            if x == 0 and n == 0:
                st.wait_lg([('a', n), ('b', k)])
            if not cfg.no_mfma: st.I(f'v_mfma_f32_16x16x32_bf16 {vr(d, 4)}, {vr(AF + 8*(n % 3) + 4*cb, 4)}, {vr(bfrag(k, rb2), 4)}, {vr(d, 4) if k else 0}')
            if x == 3 and n + 1 < len(ks):
                st.wait_lg([('a', n+1), ('b', ks[n+1][3])])
            if x == 0 and k == 0 and ph == 'B' and t >= 1:
                if t == 1:
                    st.I(f's_add_u32 s{sT}, s{sP}, {8 << 13}')
                else:
                    st.I(f's_add_u32 s{sR}, s{sJJ}, {t-1}\ns_and_b32 s{sR}, s{sR}, 7\ns_lshl_b32 s{sT}, s{sR}, 13\ns_add_u32 s{sT}, s{sT}, s{sP}')
            if x == 1 and k == 0 and si == 1:
                st.I(f'v_add_u32 v{vHW2}, {14*4096}, v{vHW}')
            if x == 1 and k == 2 and si == cfg.w2_touch_step:
                touch(2)
            if x == 1 and n in bar_mid:
                st.wait_lg([('a', n+1), 'hw'])
                if ph == 'B' and t - 1 >= cfg.direct_from and k == (cfg.ps_wait if si < 17 else 10) and not cfg.no_pwait:
                    st.wait_vm0()
                if not cfg.no_bar: st.I('s_barrier')
            for kind, a1, a2 in gaps[x]:
                if kind == 'D':
                    if not (cfg.no_read and '_tr_' in a1):
                        st.D(a1, a2)
                elif kind == 'V':
                    if not cfg.no_post:
                        st.I(a1)
                elif kind == 'HW' and not cfg.no_hw:
                    slot = 2*(a2-1)
                    hi = slot >= 14
                    st.D(f'ds_write_b128 v{vHW2 if hi else vHW}, {vr(vPK + 4*a1, 4)} offset:{(slot - (14 if hi else 0))*4096 + a1*1024}', 'hw')
                elif kind == 'PW' and not cfg.no_ps:
                    st.D(f'ds_write_b128 v{vPS}, {vr(vPK + 4*a1, 4)} offset:{L_PS + a1*1024}', 'hw')
                elif kind == 'PS' and not cfg.no_ps:
                    st.V(f'buffer_store_dwordx4 {vr(vPK + 4*a1, 4)}, v{vPS}, {sr(sWS, 4)}, s{sT} offen offset:{a1*1024} {cfg.ps_flags}')
        assert not (k == (17 if ph == 'A' else nkb-1) and (post or (pend and ph == 'B'))), (si, k, post, pend)
        if (si, k) == (9, 9):
            assert not post and not pend
        if k == (17 if ph == 'A' else nkb-1) and cfg.stamps and si in (0, 1, 8, 9, 16):
            stamp(st, cfg, {0: 2, 1: 3, 8: 4, 9: 5, 16: 6}[si], 100 if si < 9 else 16, 91 if si < 9 else 7)
    assert not post
    acc = ACC[17 & 1]
    st.I(f'v_and_b32 v17, 63, v0\nv_lshlrev_b32 v17, 4, v17\ns_lshl_b32 s{sT}, s{sC}, 12\nv_add_u32 v17, s{sT}, v17')
    for x in range(4):
        st.D(f'ds_write_b128 v17, {vr(acc + 4*x, 4)} offset:{L_DUMP + x*1024}')
    st.wait_lg0()
    st.I('s_barrier')
    stamp(st, cfg, 7, 4, 6)
    st.I('s_endpgm')


def spin(st, name, vdst, vaddr, srdn, soff, cmp_fn, need_mask, width=1):
    st.I(f's_mov_b32 s{sT+4}, 0\nL_{name}:')
    st.I(f'buffer_load_dword{"x2" if width == 2 else ""} {vr(vdst, width)}, v{vaddr}, {sr(srdn, 4)}, {soff} offen sc1\ns_waitcnt vmcnt(0)')
    st.vm = []
    st.I(cmp_fn(vdst))
    st.I(f'''s_nop 1
    s_andn2_b64 s[{sT+6}:{sT+7}], {need_mask}, vcc
    s_cbranch_scc0 L_{name}_ok
    s_add_u32 s{sT+4}, s{sT+4}, 1
    s_cmp_lt_u32 s{sT+4}, {SPIN_MAX}
    s_cbranch_scc0 L_{name}_ok
    s_sleep 1
    s_branch L_{name}
    L_{name}_ok:''')


def helper_role(st, cfg):
    R = Alloc(4, 256)
    R.take(4, 12)
    R.take(XR, 36)
    sM0, sA, sROW, sRNG, sMSK = 72, 73, 74, 92, 22
    vDA, vDB = R.take(16, 2), R.take(18, 2)
    rho_init(st, cfg)
    st.I(f'''v_lshrrev_b32 v9, 1, v6
    v_and_b32 v9, 1, v9
    v_lshrrev_b32 v10, 2, v6''')
    for par in range(2):
        st.I(f'''v_xor_b32 v11, {par}, v10
        v_lshl_add_u32 v11, v11, 1, v9
        v_lshlrev_b32 v11, 1, v11
        v_xor_b32 v11, v11, v7
        v_lshlrev_b32 v11, 4, v11
        v_mul_u32_u24 v12, 9216, v6
        v_add_u32 v{vDA+par}, v11, v12
        v_mul_u32_u24 v12, 1152, v6
        v_add_u32 v{vDB+par}, v11, v12''')
    st.I(f'''s_mul_i32 s{sM0}, s{sC}, 6144
    s_add_u32 s{sM0}, s{sM0}, {cfg.ring}
    s_mul_i32 s{sA}, s{sC}, {48*9216}
    s_mul_i32 s{sT}, s{sJ}, 1152
    s_add_u32 s{sA}, s{sA}, s{sT}''')

    def range_setup(gn):
        step = gn // 3
        if step < 9:
            st.I(f'''s_add_u32 s{sRNG}, s{sRHO}, {step}
            s_cmp_ge_u32 s{sRNG}, 9
            s_cselect_b32 s{sT}, 9, 0
            s_sub_u32 s{sRNG}, s{sRNG}, s{sT}
            s_lshl_b32 s{sRNG}, s{sRNG}, 7
            s_add_u32 s{sRNG}, s{sRNG}, s{sA}''')
        elif step == 9:
            st.I(f's_mov_b32 s{sRNG}, 1024')
        else:
            st.I(f's_add_u32 s{sRNG}, s{sJJ}, {step-9}\ns_and_b32 s{sRNG}, s{sRNG}, 7\ns_lshl_b32 s{sRNG}, s{sRNG}, 7')

    def dma(gn, u):
        g = gn % 3
        if cfg.no_dma and gn >= cfg.ns:
            return
        st.I(f's_add_u32 m0, s{sM0}, {(gn % cfg.ns)*GR + u*1024}')
        if cfg.dma_cap is not None and gn >= cfg.ns and len(st.vm) > cfg.dma_cap:
            st.I(f's_waitcnt vmcnt({cfg.dma_cap})')
            st.vm = st.vm[-cfg.dma_cap:] if cfg.dma_cap else []
        if gn < 27:
            st.I(f's_add_u32 s{sT}, s{sRNG}, {(192*g + 8*u)*9216}')
            st.V(f'buffer_load_dwordx4 v{vDA + (u & 1)}, {sr(sW1, 4)}, s{sT} offen lds', ('g', gn))
        else:
            st.I(f's_add_u32 s{sT}, s{sRNG}, s{sROW + 6*g + u}')
            st.V(f'buffer_load_dwordx4 v{vDB + (u & 1)}, {sr(sW2, 4)}, s{sT} offen lds', ('g', gn))

    range_setup(0)
    for u in range(6):
        dma(0, u)
    st.I(f'''s_lshl_b32 s{sT+1}, s{sRHO}, 6
    s_mul_i32 s{sT+2}, s{sC}, 48
    s_add_u32 s{sT+1}, s{sT+1}, s{sT+2}
    s_mul_i32 s{sT+2}, s{sJ}, 576''')
    for g in range(3):
        for u in range(6):
            d = sROW + 6*g + u
            st.I(f'''s_add_u32 s{d}, s{sT+1}, {192*g + 8*u}
            s_cmp_ge_u32 s{d}, 576
            s_cselect_b32 s{sT}, 576, 0
            s_sub_u32 s{d}, s{d}, s{sT}
            s_add_u32 s{d}, s{d}, s{sT+2}
            s_mul_i32 s{d}, s{d}, 1152''')

    side = {n: [] for n in range(-1, 56)}
    first = {n: [] for n in range(56)}
    ctx = dict(R=R, side=side, first=first, sMSK=sMSK)
    if cfg.abranch:
        import abranch
        abranch.plan(st, cfg, ctx)
    plan_final(st, cfg, ctx)
    for fn in side[-1]:
        fn()
    layernorm(st, lambda: [dma(1, u) for u in range(6)])
    for gn in range(2, cfg.ns):
        if gn % 3 == 0:
            range_setup(gn)
        for u in range(6):
            dma(gn, u)
    R.put(XR)
    for fn in ctx.get('pre0', []):
        fn()
    if cfg.prio_helper:
        st.I(f's_setprio {cfg.prio_helper}')
    st.wait_lg0()
    st.wait_vm(('g', 0))
    stamp(st, cfg, 1)
    st.I('s_barrier')
    for fn in side[0]:
        fn()
    for n in range(1, 54):
        st.wait_lg0()
        prof = cfg.hprof and cfg.hprof[0] <= n < cfg.hprof[1]
        def tick(acc):
            if prof:
                st.I(f's_memtime s[8:9]\ns_waitcnt lgkmcnt(0)\ns_sub_u32 s11, s8, s10\ns_mov_b32 s10, s8')
                if acc is not None and not (n == cfg.hprof[0] and acc == 12):
                    st.I(f's_add_u32 s{acc}, s{acc}, s11')
        if cfg.hprof and n == cfg.hprof[0]:
            st.I('s_mov_b32 s12, 0\ns_mov_b32 s13, 0\ns_mov_b32 s14, 0\ns_mov_b32 s15, 0\ns_mov_b32 s10, 0')
        tick(12)
        st.wait_vm(('g', n))
        tick(13)
        if not cfg.no_bar: st.I('s_barrier')
        tick(14)
        for fn in first[n]:
            fn()
        gn = n + cfg.ns - 1
        if gn < 54:
            if gn % 3 == 0:
                range_setup(gn)
            for u in range(6):
                dma(gn, u)
        tick(15)
        for fn in side[n]:
            fn()
    for fn in side[54]:
        fn()
    st.wait_lg0()
    st.I('s_barrier')
    for fn in side[55]:
        fn()
    if cfg.hprof:
        st.I(f's_lshl_b32 s98, s2, 3\ns_add_u32 s98, s98, s{sW}\ns_lshl_b32 s98, s98, 8\ns_add_u32 s98, s98, {WS_DBG + 0x1000000 + 16*8}')
        st.I('v_mov_b32 v12, s12\nv_mov_b32 v13, s13\nv_mov_b32 v14, s14\nv_mov_b32 v15, s15\nv_mov_b32 v11, 0')
        st.V(f'buffer_store_dwordx4 v[12:15], v11, {sr(sWS, 4)}, s98 offen')
    stamp(st, cfg, 7)
    st.I('s_endpgm')


def init_check(st, ctx):
    if ctx.get('inited'):
        return
    ctx['inited'] = True
    R = ctx['R']
    a, d = R.get(), R.get()
    st.I(f'v_and_b32 v{a}, 7, v0\nv_lshlrev_b32 v{a}, 2, v{a}')
    spin(st, 'init', d, a, sDBG, '0', lambda v: f'v_cmp_eq_u32 vcc, 32, v{v}', 'exec')
    R.put(a, d)


def plan_final(st, cfg, ctx):
    R, side, sMSK = ctx['R'], ctx['side'], ctx['sMSK']
    g = {}
    sO, sPB, sPF, sPS = 93, 3, 99, 100

    def unpack_add(dst, src, t0, first_mul=None):
        st.I(f'v_lshlrev_b32 v{t0}, 16, v{src}\nv_and_b32 v{t0+1}, s{sHIMASK}, v{src}')
        if first_mul:
            st.I(f'v_mul_f32 v{dst}, {first_mul}, v{t0}\nv_mul_f32 v{dst+1}, {first_mul}, v{t0+1}')
        else:
            st.I(f'v_add_f32 v{dst}, v{dst}, v{t0}\nv_add_f32 v{dst+1}, v{dst+1}, v{t0+1}')

    def flags_addr():
        if 'fa' in g:
            return
        g['fa'] = R.get()
        g['fd'] = R.get()
        st.I(f'v_and_b32 v{g["fa"]}, 31, v0\nv_lshlrev_b32 v{g["fa"]}, 2, v{g["fa"]}')

    def r8_poll():
        init_check(st, ctx)
        flags_addr()
        st.I(f's_mul_i32 s{sT+5}, s{sI}, {9*128}\ns_add_u32 s{sT+5}, s{sT+5}, {WS_FP + 8*128}')
        spin(st, 'r8', g['fd'], g['fa'], sWS, f's{sT+5}', lambda v: f'v_cmp_ne_u32 vcc, 0, v{v}', 'exec')
        a, b = R.get(), R.get()
        g['r8'] = R.get(9, 1)
        g['r8o'] = b
        st.I(f'''v_and_b32 v{a}, 63, v0
        v_lshrrev_b32 v4, 5, v{a}
        v_bfe_u32 v5, v{a}, 3, 2
        v_and_b32 v6, 7, v{a}
        v_lshlrev_b32 v{a}, 11, v4
        v_lshl_add_u32 v{a}, v5, 8, v{a}
        v_lshl_add_u32 v{a}, v6, 4, v{a}
        v_mul_u32_u24 v{b}, 36864, v6
        v_lshl_add_u32 v{b}, v4, 6, v{b}
        v_lshl_add_u32 v{b}, v5, 3, v{b}
        s_mul_i32 s{sT}, s{sI}, {8*73728}
        s_add_u32 s{sT}, s{sT}, {WS_P + 8*8192}
        s_lshr_b32 s{sT+1}, s{sJJ}, 2
        s_lshl_b32 s{sT+1}, s{sT+1}, 12
        s_add_u32 s{sT}, s{sT}, s{sT+1}
        s_bfe_u32 s{sT+1}, s{sJJ}, 0x10001
        s_lshl_b32 s{sT+1}, s{sT+1}, 10
        s_add_u32 s{sT}, s{sT}, s{sT+1}
        s_and_b32 s{sT+1}, s{sJJ}, 1
        s_lshl_b32 s{sT+1}, s{sT+1}, 7
        s_add_u32 s{sT}, s{sT}, s{sT+1}
        s_lshl_b32 s{sT+1}, s{sC}, 2
        s_add_u32 s{sT}, s{sT}, s{sT+1}
        s_lshl_b32 s{sO}, s{sJJ}, 8
        s_add_u32 s{sO}, s{sO}, s{sI}
        s_mul_i32 s{sO}, s{sO}, 1152
        s_lshr_b32 s{sT+1}, s{sC}, 1
        s_lshl_b32 s{sT+1}, s{sT+1}, 5
        s_add_u32 s{sO}, s{sO}, s{sT+1}
        s_and_b32 s{sT+1}, s{sC}, 1
        s_lshl_b32 s{sT+1}, s{sT+1}, 2
        s_add_u32 s{sO}, s{sO}, s{sT+1}''')
        st.V(f'buffer_load_dword v{g["r8"]+8}, v{b}, {sr(sX, 4)}, s{sO} offen offset:1024', 'r8')
        for src in range(8):
            st.V(f'buffer_load_dword v{g["r8"]+src}, v{a}, {sr(sWS, 4)}, s{sT} offen sc1', 'r8')
            if src < 7:
                st.I(f's_add_u32 s{sT}, s{sT}, 73728')
        R.put(a)

    def r8_finish():
        acc, t0 = R.get(2), R.get(2)
        st.wait_vm('r8')
        unpack_add(acc, g['r8']+8, t0, f32(LOG2E))
        for src in range(8):
            unpack_add(acc, g['r8']+src, t0)
        st.I(f'v_mul_f32 v{acc}, {f32(LN2)}, v{acc}\nv_mul_f32 v{acc+1}, {f32(LN2)}, v{acc+1}\nv_cvt_pk_bf16_f32 v{t0}, v{acc}, v{acc+1}')
        st.V(f'buffer_store_dword v{t0}, v{g["r8o"]}, {sr(sOUT, 4)}, s{sO} offen offset:1024')
        g['late_free'] = [acc, t0, g['r8'], g['r8o']]

    def own_x():
        R.put(*g['late_free'])
        g['sum'] = R.get(16)
        g['xr'] = R.get(8)
        g['oa'] = R.get()
        g['pa'] = R.get()
        a = R.get()
        st.I(f'''v_and_b32 v4, 15, v0
        v_bfe_u32 v5, v0, 4, 2
        v_mul_u32_u24 v4, 36864, v4
        v_lshl_add_u32 v{a}, v5, 3, v4
        v_and_b32 v6, 1, v5
        v_lshl_add_u32 v{g["oa"]}, v6, 5, v4
        v_lshrrev_b32 v6, 1, v5
        v_lshl_add_u32 v{g["oa"]}, v6, 4, v{g["oa"]}
        v_and_b32 v4, 63, v0
        v_lshlrev_b32 v4, 4, v4
        s_lshl_b32 s{sT}, s{sC}, 11
        v_add_u32 v{g["pa"]}, s{sT}, v4
        s_lshr_b32 s{sT}, s{sC}, 1
        s_lshl_b32 s{sT}, s{sT}, 10
        s_add_u32 s{sT}, s{sT}, s{sI}
        s_mul_i32 s{sO}, s{sT}, 1152
        s_lshl_b32 s{sT}, s{sJJ}, 7
        s_add_u32 s{sO}, s{sO}, s{sT}
        s_and_b32 s{sT}, s{sC}, 1
        s_lshl_b32 s{sT}, s{sT}, 6
        s_add_u32 s{sO}, s{sO}, s{sT}
        s_add_u32 s{sT}, s{sO}, {16*36864}
        s_mul_i32 s{sPB}, s{sI}, {8*73728}
        s_lshl_b32 s{sT+1}, s{sJJ}, 13
        s_add_u32 s{sPB}, s{sPB}, s{sT+1}
        s_add_u32 s{sPB}, s{sPB}, {WS_P}''')
        for rb2 in range(2):
            for cb in range(2):
                st.V(f'buffer_load_dwordx2 {vr(g["xr"] + 4*rb2 + 2*cb, 2)}, v{a}, {sr(sX, 4)}, s{sO if rb2 == 0 else sT} offen offset:{32*cb}', 'xr')
        R.put(a)

    def own_x_fold():
        t0 = R.get(2)
        st.wait_vm('xr')
        for e in range(8):
            unpack_add(g['sum'] + 2*e, g['xr'] + e, t0, f32(LOG2E))
        R.put(t0, g['xr'])

    def own_fetch(name, deltas):
        def fn():
            flags_addr()
            st.I(f's_mov_b32 s{sMSK}, 0\ns_mov_b32 s{sMSK+1}, 0')
            for dl in deltas:
                st.I(f'''s_sub_u32 s{sT}, s{sJ}, {dl}
                s_and_b32 s{sT}, s{sT}, 7
                s_lshl_b32 s{sT}, s{sT}, 2
                s_add_u32 s{sT}, s{sT}, s{sC}
                s_bitset1_b32 s{sMSK}, s{sT}''')
            st.I(f's_mul_i32 s{sT+5}, s{sI}, 9\ns_add_u32 s{sT+5}, s{sT+5}, s{sJJ}\ns_lshl_b32 s{sT+5}, s{sT+5}, 7\ns_add_u32 s{sT+5}, s{sT+5}, {WS_FP}')
            spin(st, name, g['fd'], g['fa'], sWS, f's{sT+5}', lambda v: f'v_cmp_ne_u32 vcc, 0, v{v}', f's[{sMSK}:{sMSK+1}]')
            for dl in deltas:
                g[('p', dl)] = R.get(8)
                st.I(f'''s_sub_u32 s{sT}, s{sJ}, {dl}
                s_and_b32 s{sT}, s{sT}, 7
                s_mul_i32 s{sT}, s{sT}, 73728
                s_add_u32 s{sT}, s{sT}, s{sPB}''')
                for rb2 in range(2):
                    st.V(f'buffer_load_dwordx4 {vr(g[("p", dl)] + 4*rb2, 4)}, v{g["pa"]}, {sr(sWS, 4)}, s{sT} offen offset:{rb2*1024} sc1', ('p', dl))
        return fn

    def own_fold(deltas):
        def fn():
            t0 = R.get(2)
            for dl in deltas:
                st.wait_vm(('p', dl))
                for e in range(8):
                    unpack_add(g['sum'] + 2*e, g[('p', dl)] + e, t0)
                R.put(g[('p', dl)])
            R.put(t0)
        return fn

    def finish():
        acc = R.get(16)
        a = R.get()
        st.I(f'v_and_b32 v{a}, 63, v0\nv_lshlrev_b32 v{a}, 4, v{a}\ns_lshl_b32 s{sT}, s{sC}, 12\nv_add_u32 v{a}, s{sT}, v{a}')
        for x in range(4):
            st.D(f'ds_read_b128 {vr(acc + 4*x, 4)}, v{a} offset:{L_DUMP + x*1024}')
        own_fetch('own_c', cfg.late)()
        st.wait_lg0()
        for rb2 in range(2):
            for cb in range(2):
                for e in range(4):
                    s_ = g['sum'] + 8*rb2 + 4*cb + e
                    st.I(f'v_add_f32 v{s_}, v{s_}, v{acc + 4*(2*cb+rb2) + e}')
        own_fold(cfg.late)()
        st.I(f's_add_u32 s{sT}, s{sO}, {16*36864}')
        for rb2 in range(2):
            o = acc + 4*rb2
            for e in range(4):
                s_ = g['sum'] + 8*rb2 + 2*e
                st.I(f'v_mul_f32 v{s_}, {f32(LN2)}, v{s_}\nv_mul_f32 v{s_+1}, {f32(LN2)}, v{s_+1}\nv_cvt_pk_bf16_f32 v{o+e}, v{s_}, v{s_+1}')
            st.I(f'v_permlane16_swap_b32 v{o}, v{o+2}\nv_permlane16_swap_b32 v{o+1}, v{o+3}')
            st.V(f'buffer_store_dwordx4 {vr(o, 4)}, v{g["oa"]}, {sr(sOUT, 4)}, s{sO if rb2 == 0 else sT} offen {cfg.outflags}')

    def pflag(t):
        def fn():
            if 'one' not in g:
                g['one'] = R.get(2)
                st.I(f'''v_mov_b32 v{g["one"]}, 0
                v_mov_b32 v{g["one"]+1}, 1
                s_mul_i32 s{sPF}, s{sI}, {9*128}
                s_lshl_b32 s{sT}, s{sJ}, 4
                s_add_u32 s{sPF}, s{sPF}, s{sT}
                s_lshl_b32 s{sT}, s{sC}, 2
                s_add_u32 s{sPF}, s{sPF}, s{sT}
                s_add_u32 s{sPF}, s{sPF}, {WS_FP}''')
            if t == 0:
                st.I(f's_add_u32 s{sT}, s{sPF}, {8*128}')
            else:
                st.I(f's_add_u32 s{sT}, s{sJJ}, {t}\ns_and_b32 s{sT}, s{sT}, 7\ns_lshl_b32 s{sT}, s{sT}, 7\ns_add_u32 s{sT}, s{sT}, s{sPF}')
            st.I('s_mov_b64 exec, 1')
            st.V(f'buffer_store_dword v{g["one"]+1}, v{g["one"]}, {sr(sWS, 4)}, s{sT} offen sc1')
            st.I('s_mov_b64 exec, -1')
        return fn

    def pstore(t):
        def fn():
            if 'psa' not in g:
                g['psa'] = R.get()
                g['psd'] = R.get(8)
                st.I(f'''v_and_b32 v{g["psa"]}, 63, v0
                v_lshlrev_b32 v{g["psa"]}, 4, v{g["psa"]}
                s_lshl_b32 s{sT}, s{sC}, 11
                v_add_u32 v{g["psa"]}, s{sT}, v{g["psa"]}
                s_lshl_b32 s{sPS}, s{sI}, 3
                s_add_u32 s{sPS}, s{sPS}, s{sJ}
                s_mul_i32 s{sPS}, s{sPS}, {9*8192}
                s_add_u32 s{sPS}, s{sPS}, {WS_P}''')
            for rb2 in range(2):
                st.D(f'ds_read_b128 {vr(g["psd"] + 4*rb2, 4)}, v{g["psa"]} offset:{L_PS + rb2*1024}')
            if t == 0:
                st.I(f's_add_u32 s{sT}, s{sPS}, {8 << 13}')
            else:
                st.I(f's_add_u32 s{sT}, s{sJJ}, {t}\ns_and_b32 s{sT}, s{sT}, 7\ns_lshl_b32 s{sT}, s{sT}, 13\ns_add_u32 s{sT}, s{sT}, s{sPS}')
            st.wait_lg0()
            for rb2 in range(2):
                st.V(f'buffer_store_dwordx4 {vr(g["psd"] + 4*rb2, 4)}, v{g["psa"]}, {sr(sWS, 4)}, s{sT} offen offset:{rb2*1024} sc1', ('ps', t))
        return fn

    def pflag_staged(t):
        def fn():
            st.wait_vm(('ps', t))
            pflag(t)()
        return fn

    for t in range(8):
        base = 27 + 3*(t+1)
        if cfg.no_ps or cfg.no_pflag:
            continue
        if t >= cfg.direct_from:
            ctx['first'][base + (2 if cfg.ps_wait == 10 or t == 7 else 3)].append(pflag(t))
        else:
            tk = base + (3 if cfg.pw_split else 2)
            ctx['first'][tk].append(pstore(t))
            side[tk + 1].insert(0, pflag_staged(t))
    if cfg.no_side:
        return
    side[cfg.t_r8].append(r8_poll)
    side[cfg.t_r8 + 3].append(r8_finish)
    side[cfg.t_r8 + 4].append(own_x)
    side[cfg.t_r8 + 6].append(own_x_fold)
    for name, tick, deltas in cfg.early:
        side[tick].append(own_fetch(name, deltas))
        side[min(tick + 3, 54)].append(own_fold(deltas))
    side[55].append(finish)


Cfg.ab_ticks = dict(s1=5, uflag=7, gens=8, ug=12, k2=15, vflag=18, vg=23, s3=26)
Cfg.dft_cuts = (0, 4, 7, 11, 15, 18)
Cfg.k2_extra = 0
Cfg.t_r8 = 39
Cfg.early = [('own_a', 48, (1, 2, 3)), ('own_b', 53, (4, 5))]
Cfg.late = (6, 7)


def build(cfg):
    pre = Stream()
    prologue_common(pre, cfg)
    stamp(pre, cfg, 0)
    pre.I(f's_cmp_ge_u32 s{sW}, 4\ns_cbranch_scc1 L_helper')
    c = pre.fork()
    compute_role(c, cfg)
    h = pre.fork()
    h.I('L_helper:')
    helper_role(h, cfg)
    rep = []
    lines = pad_hazards(pre.lines + c.lines, rep) + pad_hazards(pre.lines + h.lines, rep)[len(pad_hazards(pre.lines)):]
    hdr = open('parallel_sum__spectral_gfnet__dense_activation_silu__prompt.s.ref').read().split('; Override')[0]
    o = hdr + f'''; @launch grid=(256,1,1) block=(512,1,1) lds={L_TOTAL}
.amdgcn_target "amdgcn-amd-amdhsa--gfx950"
.text
.globl {KN}
.p2align 8
.type {KN},@function
{KN}:
''' + '\n'.join(lines) + f'''
L_end:
  s_endpgm
.section .rodata,"a"
.p2align 6
.amdhsa_kernel {KN}
  .amdhsa_next_free_vgpr 256
  .amdhsa_next_free_sgpr 102
  .amdhsa_accum_offset 256
  .amdhsa_group_segment_fixed_size 0
  .amdhsa_kernarg_size 72
  .amdhsa_user_sgpr_count 2
  .amdhsa_user_sgpr_kernarg_segment_ptr 1
  .amdhsa_system_sgpr_workgroup_id_x 1
  .amdhsa_float_denorm_mode_32 3
.end_amdhsa_kernel
'''
    return o, rep


def make(path, **kw):
    cfg = Cfg()
    for k, v in kw.items():
        setattr(cfg, k, v)
    o, rep = build(cfg)
    open(path, 'w').write(o)
    return rep


if __name__ == '__main__':
    import gen
    rep = gen.make(sys.argv[1] if len(sys.argv) > 1 else 'k.s')
    print(len(rep), 'hazard pads')
    for r in rep[:40]:
        print(r)
```
